```python
import torch

def _softmax(x, axis=-1):
    return torch.softmax(x, dim=axis)
def _gelu(x):
    return torch.nn.functional.gelu(x, approximate="tanh")
def _silu(x):
    return torch.nn.functional.silu(x)
def _sigmoid(x):
    return torch.sigmoid(x)
def _layernorm(x, axis=-1, eps=1e-5):
    m = x.mean(dim=axis, keepdim=True)
    v = x.var(dim=axis, keepdim=True, unbiased=False)
    return (x - m) / torch.sqrt(v + eps)
def _scatter_add(tgt, idx, src, axis=0):
    return tgt.clone().index_add_(axis, idx, src)
def _segment_sum(src, seg, n):
    out = torch.zeros((n,) + src.shape[1:], dtype=src.dtype)
    return out.index_add_(0, seg, src)
def _pad(x, pw):
    flat = tuple(v for pair in reversed(pw) for v in pair)
    return torch.nn.functional.pad(x, flat)

kernel_name = 'interleave_layers__ssm_conv_h3__mixer_s_mlp__prompt'

def setup_inputs():

    _w = (lambda a: (lambda t: t.to(torch.bfloat16) if t.is_floating_point() else t)(torch.as_tensor(a)))
    def _A_setup():
        B, S, D = 1, 2048, 640
        ks = 4
        return {
            "q": _w((lambda *s: torch.randn(*s, dtype=torch.bfloat16) * 0.05)(B, S, D)),
            "k": _w((lambda *s: torch.randn(*s, dtype=torch.bfloat16) * 0.8)(B, S, D)),
            "v": _w((lambda *s: torch.randn(*s, dtype=torch.bfloat16) * 0.8)(B, S, D)),
            "shift_k": _w((lambda *s: torch.randn(*s, dtype=torch.bfloat16) * 0.8)(D, ks) * 0.5),
            "ssm_k": _w((lambda *s: torch.randn(*s, dtype=torch.bfloat16) * 0.8)(D, S) * (1.0 / S ** 0.5)),
            "ssm_D": _w((lambda *s: torch.randn(*s, dtype=torch.bfloat16) * 0.8)(D)),
        }
    _A_in = _A_setup()

    def _B_setup():
        B, S, D, F = 1, 2048, 640, 1536
        return {
            "x":  _w((lambda *s: torch.randn(*s, dtype=torch.bfloat16) * 0.05)(B, S, D)),
            "w1": _w((lambda *s: torch.randn(*s, dtype=torch.bfloat16) * 3.2)(D, D) * (D ** -0.5)),
            "w2": _w((lambda *s: torch.randn(*s, dtype=torch.bfloat16) * 3.2)(D, D) * (D ** -0.5)),
            "w3": _w((lambda *s: torch.randn(*s, dtype=torch.bfloat16) * 3.2)(D, F) * (D ** -0.5)),
            "w4": _w((lambda *s: torch.randn(*s, dtype=torch.bfloat16) * 3.2)(F, D) * (F ** -0.5)),
        }
    _B_in = _B_setup()

    return {
        "A_q": _A_in["q"],
        "A_k": _A_in["k"],
        "A_v": _A_in["v"],
        "A_shift_k": _A_in["shift_k"],
        "A_ssm_k": _A_in["ssm_k"],
        "A_ssm_D": _A_in["ssm_D"],
        "B_x": _B_in["x"],
        "B_w1": _B_in["w1"],
        "B_w2": _B_in["w2"],
        "B_w3": _B_in["w3"],
        "B_w4": _B_in["w4"],
    }

def reference(A_q, A_k, A_v, A_shift_k, A_ssm_k, A_ssm_D, B_x, B_w1, B_w2, B_w3, B_w4):
    def _A_ref(q, k, v, shift_k, ssm_k, ssm_D):
        B, S, D = q.shape
        ks = shift_k.shape[-1]
        k_pad = _pad(k, ((0, 0), (ks - 1, 0), (0, 0)))
        k_shift = torch.zeros_like(k)
        for t in range(ks):
            k_shift = k_shift + k_pad[:, t:t + S, :] * shift_k[:, ks - 1 - t][None, None, :]
        kv = k_shift * v
        L = 2 * S
        kv_pad = _pad(kv, ((0, 0), (0, S), (0, 0)))
        kf_pad = _pad(ssm_k, ((0, 0), (0, S)))
        kv_f = (lambda x, axes=(-2,-1): torch.fft.rfft2(x.float(), dim=axes))(kv_pad[:, None, :, :], axes=(1, 2))
        kf_f = (lambda x, axes=(-2,-1): torch.fft.rfft2(x.float(), dim=axes))(kf_pad[:, None, :], axes=(1, 2))
        kf_f = (lambda x, *d: x.permute(*d))(kf_f, 1, 2, 0)
        y_f = kv_f * kf_f[None, :, :, :]
        y = (lambda x, s, axes=(-2,-1): torch.fft.irfft2(x, s=s, dim=axes).to(torch.bfloat16))(y_f, (1, L), axes=(1, 2))[:, 0, :S, :]
        y = y + kv * ssm_D[None, None, :]
        return q * y

    def _B_ref(x, w1, w2, w3, w4):
        B, S, D = x.shape
        h = _gelu(_layernorm(x, axis=-1) @ w1)
        c = D // 4
        g0 = _pad(h[:, :, 0*c:1*c], ((0, 0), (1, 0), (0, 0)))[:, :S, :]
        g1 = _pad(h[:, :, 1*c:2*c], ((0, 0), (0, 1), (0, 0)))[:, 1:, :]
        g2 = _pad(h[:, :, 2*c:3*c], ((0, 0), (2, 0), (0, 0)))[:, :S, :]
        g3 = _pad(h[:, :, 3*c:   ], ((0, 0), (0, 2), (0, 0)))[:, 2:, :]
        hs = torch.concatenate([g0, g1, g2, g3], axis=-1) @ w2
        x1 = x + hs
        h2 = _gelu(_layernorm(x1, axis=-1) @ w3) @ w4
        return x1 + h2

    x = A_q
    x = x + _A_ref(_layernorm(x, axis=-1), A_k, A_v, A_shift_k, A_ssm_k, A_ssm_D)
    x = x + _B_ref(_layernorm(x, axis=-1), B_w1, B_w2, B_w3, B_w4)
    x = x + _A_ref(_layernorm(x, axis=-1), A_k, A_v, A_shift_k, A_ssm_k, A_ssm_D)
    x = x + _B_ref(_layernorm(x, axis=-1), B_w1, B_w2, B_w3, B_w4)
    return x
```

```python
import re

TRANS = ("v_exp_f32","v_log_f32","v_rcp_f32","v_rsq_f32","v_sqrt_f32","v_sin_f32","v_cos_f32","v_rcp_iflag_f32")
REG = re.compile(r"^(-|\|)?(?:abs\()?([vas])(?:(\d+)|\[(\d+):(\d+)\])\)?\|?$")

def regs_of(op):
    op = op.strip()
    if op in ("vcc",): return [("s",106),("s",107)]
    if op == "vcc_lo": return [("s",106)]
    if op == "vcc_hi": return [("s",107)]
    if op == "exec": return [("s",126),("s",127)]
    if op == "exec_lo": return [("s",126)]
    if op == "exec_hi": return [("s",127)]
    if op == "m0": return [("s",124)]
    m = REG.match(op)
    if not m: return []
    f = m.group(2)
    if m.group(3) is not None: return [(f,int(m.group(3)))]
    return [(f,i) for i in range(int(m.group(4)), int(m.group(5))+1)]

class Ins:
    __slots__=("text","mn","ops","cls","wr","rd","passes","srcC","srcAB","ws","wide","lds","target","dpp")
    def __init__(self, text):
        self.text = text
        t = text.split(";")[0].strip()
        parts = t.split(None,1)
        mn = parts[0]; self.mn = mn
        rest = parts[1] if len(parts)>1 else ""
        ops=[]; depth=0; cur=""
        for ch in rest:
            if ch in "[(": depth+=1
            if ch in "])": depth-=1
            if ch=="," and depth==0: ops.append(cur.strip()); cur=""
            else: cur+=ch
        if cur.strip(): ops.append(cur.strip())
        mods=""
        if ops:
            last=ops[-1].split(None,1)
            ops[-1]=last[0]; mods=last[1] if len(last)>1 else ""
        self.ops=ops
        self.passes=0; self.srcC=[]; self.srcAB=[]; self.ws=1; self.wide=False; self.lds=False; self.target=None
        self.dpp = ("_dpp" in mn) or ("row_" in mods) or ("wave_s" in mods) or ("quad_perm" in mods)
        R=[regs_of(o) for o in ops]
        flat=lambda L:[x for l in L for x in l]
        base=re.sub(r"_(e32|e64|dpp|sdwa)$","",mn)
        if mn.startswith("v_mfma"):
            self.cls="mfma"; self.wr=R[0]; self.rd=flat(R[1:]); self.srcAB=flat(R[1:3]); self.srcC=R[3]
            self.passes = 8 if "32x32" in mn else 4
        elif mn.startswith("v_"):
            self.cls="trans" if base in TRANS else "valu"
            if base.startswith("v_cmp"):
                self.wr=R[0]; self.rd=flat(R[1:])
                assert not base.startswith("v_cmpx")
            elif "permlane" in base and "swap" in base:
                self.wr=flat(R); self.rd=flat(R)
            elif base in ("v_add_co_u32","v_sub_co_u32","v_subrev_co_u32","v_addc_co_u32","v_subb_co_u32"):
                self.wr=flat(R[:2]); self.rd=flat(R[2:])
            elif base.startswith("v_fmac") or base.startswith("v_pk_fmac") or base.startswith("v_dot2c") or base=="v_writelane_b32":
                self.wr=R[0]; self.rd=flat(R)
            elif base=="v_nop":
                self.wr=[]; self.rd=[]
            else:
                self.wr=R[0]; self.rd=flat(R[1:])
            if self.dpp: self.rd = self.rd + R[0]
        elif mn.startswith("ds_"):
            self.cls="ds"
            if mn.startswith("ds_read") or mn.startswith("ds_bpermute") or mn.startswith("ds_permute") or mn.startswith("ds_swizzle"):
                self.wr=R[0]; self.rd=flat(R[1:])
            else: self.wr=[]; self.rd=flat(R)
        elif mn.startswith("buffer_") or mn.startswith("global_"):
            self.cls="vmem"
            self.lds = (" lds" in " "+mods) or ("_lds_" in mn)
            if "load" in mn and not self.lds: self.wr=R[0]; self.rd=flat(R[1:])
            elif "atomic" in mn and "sc0" in mods: self.wr=R[0]; self.rd=flat(R)
            else: self.wr=[]; self.rd=flat(R)
            if self.lds: self.rd=self.rd+[("s",124)]
            self.wide = ("store_dwordx4" in mn or "store_dwordx3" in mn)
        elif mn.startswith("s_"):
            self.cls="salu"
            if mn=="s_nop": self.ws=int(ops[0],0)+1; self.wr=[]; self.rd=[]
            elif mn.startswith("s_cbranch") or mn=="s_branch":
                self.cls="branch"; self.target=ops[0]; self.wr=[]; self.rd=[]
            elif mn.startswith("s_cmp") or mn.startswith("s_bitcmp") or mn in ("s_waitcnt","s_barrier","s_endpgm","s_setprio","s_sleep"):
                self.wr=[]; self.rd=flat(R)
            elif mn.startswith("s_load") or mn.startswith("s_mem"):
                self.cls="smem"; self.wr=R[0]; self.rd=flat(R[1:])
            elif "saveexec" in mn:
                self.wr=R[0]+[("s",126),("s",127)]; self.rd=flat(R[1:])
            else:
                self.wr=R[0]; self.rd=flat(R[1:])
        else:
            raise ValueError("cannot parse: "+text)

def need(p, c):
    n=0
    pw=set(p.wr);
    def hit(a,b): return bool(set(a)&set(b))
    pv = p.cls in ("valu","trans")
    cv = c.cls in ("valu","trans")
    vw=[r for r in p.wr if r[0]!="s"]; sw=[r for r in p.wr if r[0]=="s"]
    if pv:
        if c.cls=="mfma" and hit(vw,c.rd): n=max(n,2)
        if sw:
            if c.cls=="vmem" and hit(sw,c.rd): n=max(n,5)
            if cv and hit(sw,c.rd): n=max(n, 4 if c.mn.startswith(("v_readlane","v_writelane")) else 2)
            if c.cls in("salu","branch") and hit(sw,c.rd): n=max(n,1)
        if c.mn.startswith(("v_readlane","v_readfirstlane")) and hit(vw,c.rd): n=max(n,1)
        if "permlane" in c.mn and hit(vw,c.rd): n=max(n,2)
        if c.dpp and hit(vw,c.rd): n=max(n,2)
        if p.cls=="trans" and (cv or c.cls in("ds","vmem","mfma")) and hit(vw,c.rd): n=max(n,1)
    if p.cls=="mfma":
        big = 8 if p.passes==4 else 12
        if cv and (hit(p.wr,c.rd) or hit(p.wr,c.wr)): n=max(n,big)
        if c.cls in("ds","vmem") and (hit(p.wr,c.rd) or hit(p.wr,c.wr)): n=max(n,big)
        if c.cls=="mfma":
            if hit(p.wr,c.srcAB): n=max(n,big)
            if hit(p.wr,c.srcC) and not (p.wr==c.srcC and p.passes==c.passes): n=max(n,big-2)
            elif hit(p.wr,c.wr) and not hit(p.wr,c.srcC): n=max(n,big)
        if cv and hit(p.srcC,c.wr): n=max(n, 3 if p.passes==4 else 7)
    if p.cls=="vmem" and p.wide:
        data=regs_of(p.ops[0]) if p.mn.startswith("buffer") else regs_of(p.ops[1])
        if hit(data,c.wr): n=max(n, 2)
    if p.cls=="salu" and ("s",124) in pw and c.cls=="vmem" and c.lds: n=max(n,1)
    return n

MAXW=12
def fix_hazards(lines):
    items=[]
    for l in lines:
        s=l.split(";")[0].strip()
        if not s or s.startswith("."): items.append(("x",l))
        elif s.endswith(":"): items.append(("l",s[:-1],l))
        else: items.append(("i",Ins(l)))
    srcs={}
    for k,it in enumerate(items):
        if it[0]=="i" and it[1].target: srcs.setdefault(it[1].target,[]).append(k)
    pad=[0]*len(items)
    def scan(k, dist, c, seen):
        best=0
        j=k-1
        while j>=0 and dist<MAXW:
            it=items[j]
            if it[0]=="l":
                for s in srcs.get(it[1],[]):
                    if (s,dist) not in seen:
                        seen.add((s,dist))
                        best=max(best, scan(s+1, dist, c, seen))
            elif it[0]=="i":
                p=it[1]
                if p.mn in("s_branch","s_endpgm") and j!=k-1+0 and False: pass
                nn=need(p,c)
                if nn>dist: best=max(best, nn-dist)
                dist+=p.ws+pad[j]
                if p.mn in ("s_branch","s_endpgm") and not (j==k-1 and seen):
                    break
            j-=1
        return best
    for k,it in enumerate(items):
        if it[0]=="i":
            pad[k]=scan(k,0,it[1],set())
    out=[]; total=0
    for k,it in enumerate(items):
        if it[0]=="i":
            if pad[k]:
                out.append(f"s_nop {pad[k]-1}"); total+=pad[k]
            out.append(it[1].text)
        elif it[0]=="l": out.append(it[2])
        else: out.append(it[1])
    return out,total

class Prog:
    def __init__(self):
        self.lines=[]; self.vmq=[]; self.lgq=[]; self.uid=0; self.maxvm=0
    def __call__(self, s):
        for l in s.split("\n"):
            l=l.strip()
            if l: self.lines.append(l)
    def label(self, base="L"):
        self.uid+=1; return f"{base}_{self.uid}"
    def vm(self, s, tag=None):
        self(s); self.vmq.append(tag); self.maxvm=max(self.maxvm,len(self.vmq))
        assert len(self.vmq)<=63, "too many outstanding vm ops"
    def vm_count(self, tag=None):
        self.vmq.append(tag); self.maxvm=max(self.maxvm,len(self.vmq)); assert len(self.vmq)<=63
    def wait_vm(self, *tags):
        idx=-1
        for i,t in enumerate(self.vmq):
            if t in tags: idx=i
        if idx<0: return
        n=len(self.vmq)-1-idx
        self._wait(vm=n); self.vmq=self.vmq[idx+1:]
    def wait_vm0(self):
        self._wait(vm=0); self.vmq=[]
    def ds(self, s, tag=None):
        self(s); self.lgq.append(tag)
    def wait_ds(self, *tags):
        idx=-1
        for i,t in enumerate(self.lgq):
            if t in tags: idx=i
        if idx<0: return
        n=len(self.lgq)-1-idx
        self._wait(lg=min(n,15));
        self.lgq=self.lgq[idx+1:] if n<=15 else self.lgq[len(self.lgq)-15:]
    def wait_ds0(self):
        self._wait(lg=0); self.lgq=[]
    def _wait(self, vm=None, lg=None):
        if self.lines and self.lines[-1].startswith("s_waitcnt"):
            prev=self.lines.pop()
            m=re.search(r"vmcnt\((\d+)\)",prev);
            if m: vm=int(m.group(1)) if vm is None else min(vm,int(m.group(1)))
            m=re.search(r"lgkmcnt\((\d+)\)",prev)
            if m: lg=int(m.group(1)) if lg is None else min(lg,int(m.group(1)))
        s="s_waitcnt"
        if vm is not None: s+=f" vmcnt({vm})"
        if lg is not None: s+=f" lgkmcnt({lg})"
        self.lines.append(s)
    def srd(self, d, b, size, off=0):
        if off:
            self(f"s_add_u32 s{d}, s{b}, {off}\ns_addc_u32 s{d+1}, s{b+1}, 0\ns_and_b32 s{d+1}, s{d+1}, 0xffff")
        else:
            self(f"s_mov_b32 s{d}, s{b}\ns_and_b32 s{d+1}, s{b+1}, 0xffff")
        self(f"s_mov_b32 s{d+2}, {size}\ns_mov_b32 s{d+3}, 0x20000")
    def text(self):
        out,total=fix_hazards(self.lines)
        return "\n".join(out)+"\n", total

def kernel(name, prog, vgpr, acc):
    body,n=prog.text()
    return (f".text\n.globl {name}\n.p2align 8\n.type {name},@function\n{name}:\n"+body+
            f"""{name}_end:
.section .rodata,"a"
.p2align 6
.amdhsa_kernel {name}
  .amdhsa_next_free_vgpr {vgpr}
  .amdhsa_next_free_sgpr 102
  .amdhsa_accum_offset {acc}
  .amdhsa_group_segment_fixed_size 0
  .amdhsa_kernarg_size 112
  .amdhsa_user_sgpr_count 2
  .amdhsa_user_sgpr_kernarg_segment_ptr 1
  .amdhsa_system_sgpr_workgroup_id_x 1
.end_amdhsa_kernel
""")
def vr(a,n=1): return f"v{a}" if n==1 else f"v[{a}:{a+n-1}]"
def ar(a,n=1): return f"a{a}" if n==1 else f"a[{a}:{a+n-1}]"
def sr(a,n=1): return f"s{a}" if n==1 else f"s[{a}:{a+n-1}]"
```

```python
from asmgen import *
from layout import *

def gen_k0(cfg):
    p=Prog()
    p(f"""
s_cmp_ge_u32 s2, 320
s_cbranch_scc1 k0_exit
s_load_dwordx4 s[4:7], s[0:1], 8
s_load_dwordx2 s[8:9], s[0:1], 24
s_load_dwordx2 s[10:11], s[0:1], 104
s_mul_hi_u32 s20, s2, 0x1999999a
s_mul_i32 s21, s20, 10
s_sub_u32 s21, s2, s21
v_and_b32 v1, 31, v0
v_lshrrev_b32 v2, 5, v0
s_lshl_b32 s22, s20, 6                  ; s0
v_lshl_add_u32 v3, v2, 3, s22
v_mul_u32_u24 v4, 1280, v3
s_lshl_b32 s23, s21, 7
v_lshl_add_u32 v5, v1, 2, s23
v_add_u32 v4, v4, v5
v_subrev_u32 v6, 3840, v4
v_lshlrev_b32 v7, 2, v5
s_mov_b32 s24, 5120
s_waitcnt lgkmcnt(0)
""")
    p.srd(12,4,NBYTES); p.srd(16,6,NBYTES); p.srd(28,8,DM*8); p.srd(32,10,WS_USED)
    nt=cfg.get("k0_nt","nt")
    K=16; V=32; SK=8
    for i in range(3): p.vm(f"buffer_load_dword v{K+i}, v6, s[12:15], 0 offen offset:{1280*i} {nt}", "k")
    for i in range(8):
        so = "0" if i<4 else "s24"
        p.vm(f"buffer_load_dword v{K+3+i}, v4, s[12:15], {so} offen offset:{1280*(i%4)} {nt}", "k")
    p.vm(f"buffer_load_dwordx4 v[{SK}:{SK+3}], v7, s[28:31], 0 offen", "k")
    for i in range(8):
        so = "0" if i<4 else "s24"
        p.vm(f"buffer_load_dword v{V+i}, v4, s[16:19], {so} offen offset:{1280*(i%4)} {nt}", "v")
    p(f"""
v_mov_b32 v12, 0
v_mov_b32 v13, 0
v_mov_b32 v14, 0
v_mov_b32 v15, 0
v_lshlrev_b32 v44, 4, v0
s_lshl_b32 s25, s2, 12
s_add_u32 s25, s25, {ZERO}
""")
    p.vm("buffer_store_dwordx4 v[12:15], v44, s[32:35], s25 offen", "z")
    if cfg.get("k0_extra"): cfg["k0_extra"](p)
    p(f"""
v_mul_u32_u24 v45, 288, v1
v_sub_u32 v46, 7, v2
v_lshl_add_u32 v45, v46, 4, v45
v_lshrrev_b32 v46, 3, v0                ; channel 0..31
v_and_b32 v47, 7, v0
v_mul_u32_u24 v48, 144, v46
v_lshl_add_u32 v48, v47, 4, v48
v_lshlrev_b32 v49, 12, v46
v_lshl_add_u32 v49, v47, 4, v49
s_lshl_b32 s26, s21, 18                 ; group*64*4096
s_lshl_b32 s27, s20, 7
s_sub_u32 s27, {4096-128}, s27
s_add_u32 s26, s26, s27
s_add_u32 s26, s26, {KVT}
s_add_u32 s27, s26, {32*4096}
s_mov_b32 s36, 0xffff0000
""")
    p.wait_vm("k")
    KF=64; SF=52
    for t in range(4):
        src=SK+(t>>1)
        for c in range(2):
            r=src+2*c
            if t&1: p(f"v_and_b32 v{SF+2*t+c}, s36, v{r}")
            else:   p(f"v_lshlrev_b32 v{SF+2*t+c}, 16, v{r}")
    for i in range(11):
        p(f"v_lshlrev_b32 v{KF+2*i}, 16, v{K+i}\nv_and_b32 v{KF+2*i+1}, s36, v{K+i}")
    KS=96
    for i in range(8):
        p(f"v_pk_mul_f32 {vr(KS+2*i,2)}, {vr(KF+2*i,2)}, {vr(SF+6,2)}")
    for t in (2,1,0):
        for i in range(8):
            p(f"v_pk_fma_f32 {vr(KS+2*i,2)}, {vr(KF+2*(i+3-t),2)}, {vr(SF+2*t,2)}, {vr(KS+2*i,2)}")
    p.wait_vm("v")
    for i in range(8):
        p(f"v_lshlrev_b32 v{KF+2*i}, 16, v{V+i}\nv_and_b32 v{KF+2*i+1}, s36, v{V+i}")
    for i in range(8):
        p(f"v_pk_mul_f32 {vr(KS+2*i,2)}, {vr(KS+2*i,2)}, {vr(KF+2*i,2)}")
    for c in range(2):
        for d in range(4):
            p(f"v_cvt_pk_bf16_f32 v{16+4*c+d}, v{KS+2*(7-2*d)+c}, v{KS+2*(6-2*d)+c}")
        p.ds(f"ds_write_b128 v45, {vr(16+4*c,4)} offset:{144*c}")
    p.wait_ds0(); p("s_barrier")
    p.ds("ds_read_b128 v[24:27], v48","a"); p.ds(f"ds_read_b128 v[28:31], v48 offset:{32*144}","b")
    st=cfg.get("k0_st","")
    p.wait_ds("a"); p.vm(f"buffer_store_dwordx4 v[24:27], v49, s[32:35], s26 offen {st}")
    p.wait_ds("b"); p.vm(f"buffer_store_dwordx4 v[28:31], v49, s[32:35], s27 offen {st}")
    p("k0_exit:\ns_endpgm")
    return kernel("tr_kernel", p, 128, 128), "; @launch kernel=tr_kernel grid=(320,1,1) block=(256,1,1) lds=9216"
```

```python
from asmgen import *
from layout import *

CW=21504; CP=4160; UO=16640
def conv_body(p, cfg):
    nt=cfg.get("h_nt","")
    p(f"""
s_lshr_b32 s22, s21, 1
s_lshl_b32 s22, s22, 2
s_load_dword s23, s[8:9], s22
s_mul_i32 s24, s20, {CW}
s_lshl_b32 s25, s21, 12                ; channel*4096
v_lshlrev_b32 v2, 4, v1                ; lane*16
""")
    L0=64; L2=80; N1=96; E=100
    for ch in range(4):
        p.vm(f"buffer_load_dwordx4 {vr(L0+4*ch,4)}, v2, s[12:15], s25 offen offset:{1024*ch} {nt}", f"h{ch}")
        p.vm(f"buffer_load_dwordx4 {vr(L2+4*ch,4)}, v2, s[12:15], s25 offen offset:{1024*ch+4} {nt}", f"h{ch}")
        p.vm(f"buffer_load_dword v{N1+ch}, v2, s[12:15], s25 offen offset:{1024*ch+20} {nt}", f"h{ch}")
    p(f"s_add_u32 s26, s25, {KVT}\ns_add_u32 m0, s24, {UO}")
    for ch in range(4):
        p.vm(f"buffer_load_dwordx4 v2, s[32:35], s26 offen offset:{1024*ch} lds", "u")
    p(f"""
v_and_b32 v3, 15, v1                   ; m / n
v_lshrrev_b32 v4, 4, v1                ; g
v_add_u32 v5, s24, v2
v_mov_b32 v8, 0
v_mov_b32 v9, 0
v_mov_b32 v10, 0
v_mov_b32 v11, 0
v_add_u32 v6, {UO+4096}, v5
v_bfe_u32 v7, v1, 1, 2
v_mul_u32_u24 v7, {CP}, v7
v_and_b32 v12, 1, v1
v_lshl_add_u32 v7, v12, 4, v7
v_add_u32 v7, s24, v7
v_cmp_gt_u32 vcc, 32, v1
v_cndmask_b32 v6, v7, v6, vcc
s_mov_b32 exec_hi, 0xff
""")
    p.ds("ds_write_b128 v6, v[8:11]")
    p(f"""
s_mov_b64 exec, -1
v_add_u32 v12, 1, v3
v_and_b32 v13, 3, v12
v_sub_u32 v12, v12, v13
v_lshl_add_u32 v12, v4, 3, v12
v_lshlrev_b32 v12, 1, v12
v_mul_u32_u24 v13, {CP}, v13
v_add3_u32 v14, v12, v13, s24          ; v14 = A address
v_lshlrev_b32 v12, 5, v3
v_lshlrev_b32 v13, 4, v4
v_sub_u32 v12, v13, v12
v_add_u32 v12, {UO+480}, v12
v_add_u32 v15, s24, v12                ; v15 = B address
v_lshlrev_b32 v12, 5, v3
v_lshl_add_u32 v16, v4, 3, v12
s_waitcnt lgkmcnt(0)
s_and_b32 s22, s21, 1
s_lshl_b32 s22, s22, 4
s_lshr_b32 s23, s23, s22
s_and_b32 s23, s23, 0xffff
v_sub_u32 v12, 15, v3
v_and_b32 v13, 1, v12
v_lshlrev_b32 v13, 4, v13
v_lshlrev_b32 v13, v13, s23
v_lshrrev_b32 v12, 1, v12
v_lshlrev_b32 v17, 2, v4
v_sub_u32 v12, v12, v17
""")
    p.lgq=[]
    for d in range(4):
        p(f"v_cmp_eq_u32 vcc, {d}, v12\nv_cndmask_b32 v{20+d}, 0, v13, vcc")
    for ch in range(4):
        p.wait_vm(f"h{ch}")
        a=L0+4*ch; b=L2+4*ch
        p.ds(f"ds_write_b128 v5, {vr(a,4)} offset:{32+1024*ch}")
        p.ds(f"ds_write_b128 v5, {vr(b,4)} offset:{2*CP+32+1024*ch}")
        e=E+8*(ch&1)
        for k in range(4): p(f"v_alignbit_b32 v{e+k}, v{b+k}, v{a+k}, 16")
        nxt=[a+2,a+3,b+3,N1+ch]
        for k in range(4): p(f"v_alignbit_b32 v{e+4+k}, v{nxt[k]}, v{b+k}, 16")
        p.ds(f"ds_write_b128 v5, {vr(e,4)} offset:{CP+32+1024*ch}")
        p.ds(f"ds_write_b128 v5, {vr(e+4,4)} offset:{3*CP+32+1024*ch}")
        if ch==0:
            p(f"v_lshlrev_b32 v12, 16, v{a}\ns_mov_b64 exec, 1")
            p.ds(f"ds_write_b32 v5, v12 offset:{CP+28}")
            p.ds(f"ds_write_b32 v5, v{a} offset:{2*CP+28}")
            p.ds(f"ds_write_b32 v5, v12 offset:{3*CP+24}")
            p.ds(f"ds_write_b32 v5, v{e} offset:{3*CP+28}")
            p("s_mov_b64 exec, -1")
    p.wait_vm("u")
    p.wait_ds0()
    ACC=32; AB=[128,160]; BB=[192,224]
    def reads(r):
        L=[]
        for x in range(8):
            a=AB[r&1]+4*x; b=BB[r&1]+4*x
            L.append((f"ds_read_b64 {vr(a,2)}, v14 offset:{64*r+512*x}", None))
            L.append((f"ds_read_b64 {vr(a+2,2)}, v14 offset:{64*r+512*x+8}", f"A{r}_{x}"))
            L.append((f"ds_read_b128 {vr(b,4)}, v15 offset:{512*(7-x)+64*r}", f"B{r}_{x}"))
        return L
    for s,t in reads(0)[:12]: p.ds(s,t)
    pend=reads(0)[12:]
    started=set()
    for r in range(8):
        pairs=[(q,i) for L in range(8) for q in range(L+1) for i in range(L+1) if max(q,i)==L and q+i<=7]
        if r==7: pairs.sort(key=lambda x:(x[0]+x[1]))
        if r<7: pend=pend+reads(r+1)
        for (q,i) in pairs:
            p.wait_ds(f"A{r}_{q}", f"B{r}_{i}")
            j=q+i
            c = vr(ACC+4*j,4) if j in started else "0"
            started.add(j)
            p(f"v_mfma_f32_16x16x32_bf16 {vr(ACC+4*j,4)}, {vr(AB[r&1]+4*q,4)}, {vr(BB[r&1]+4*i,4)}, {c}")
            if r==0 and q==0:
                p(f"v_mfma_f32_16x16x32_bf16 {vr(ACC+4*j,4)}, v[20:23], {vr(BB[0]+4*i,4)}, {vr(ACC+4*j,4)}")
            if pend:
                s,t=pend.pop(0); p.ds(s,t)
            if r==0 and pend and len(pend)>24:
                s,t=pend.pop(0); p.ds(s,t)
    assert not pend
    p(f"s_add_u32 s26, s25, {YT}")
    st=cfg.get("y_st","")
    for j in range(8):
        p(f"v_cvt_pk_bf16_f32 v{64+2*j}, v{ACC+4*j}, v{ACC+4*j+1}\nv_cvt_pk_bf16_f32 v{65+2*j}, v{ACC+4*j+2}, v{ACC+4*j+3}")
        p.vm(f"buffer_store_dwordx2 {vr(64+2*j,2)}, v16, s[32:35], s26 offen offset:{512*j} {st}")
    p.vmq=[]

def prepack_body(p, cfg):
    nt=cfg.get("w_nt","nt"); st=cfg.get("wp_st","")
    p(f"""
s_cmp_ge_u32 s21, 340
s_cbranch_scc1 k1_exit
s_mov_b32 s44, 1280
s_mov_b32 s45, 0
s_mov_b32 s46, 5
s_mov_b32 s47, 0x33333334
s_mov_b64 s[12:13], s[36:37]
s_mov_b32 s14, {DM*DM*2}
s_mov_b32 s48, 1
s_cmp_lt_u32 s21, 50
s_cbranch_scc1 pp_sel
s_sub_u32 s21, s21, 50
s_mov_b32 s45, {W2_POS}
s_mov_b64 s[12:13], s[38:39]
s_mov_b32 s48, 0
s_cmp_lt_u32 s21, 50
s_cbranch_scc1 pp_sel
s_sub_u32 s21, s21, 50
s_mov_b32 s45, {W3_POS}
s_mov_b64 s[12:13], s[40:41]
s_mov_b32 s14, {DM*FF*2}
s_mov_b32 s44, 3072
s_mov_b32 s48, 1
s_cmp_lt_u32 s21, 120
s_cbranch_scc1 pp_sel
s_sub_u32 s21, s21, 120
s_mov_b32 s45, {W4_POS}
s_mov_b64 s[12:13], s[42:43]
s_mov_b32 s44, 1280
s_mov_b32 s46, 12
s_mov_b32 s47, 0x15555556
s_mov_b32 s48, 0
pp_sel:
s_and_b32 s13, s13, 0xffff
s_mov_b32 s15, 0x20000
s_mul_hi_u32 s49, s21, s47
s_mul_i32 s50, s49, s46
s_sub_u32 s50, s21, s50                ; chunk
s_lshl_b32 s51, s50, 7
s_mul_i32 s51, s51, s44
s_lshl_b32 s52, s49, 7
s_add_u32 s51, s51, s52
s_lshl_b32 s53, s44, 3                 ; 8 rows
v_lshrrev_b32 v2, 3, v1
v_mul_lo_u32 v2, v2, s44
v_and_b32 v3, 7, v1
v_lshl_add_u32 v2, v3, 4, v2
s_lshl_b32 s24, s20, 14
s_mov_b32 m0, s24
""")
    for i in range(16):
        p.vm(f"buffer_load_dwordx4 v2, s[12:15], s51 offen {nt} lds", f"r{i//4}")
        if i<15: p(f"s_add_u32 s51, s51, s53\ns_add_u32 m0, m0, 1024")
    p(f"""
v_lshrrev_b32 v4, 4, v1                ; g
v_bfe_u32 v5, v1, 2, 2                 ; r
v_lshl_add_u32 v5, v4, 3, v5
v_lshlrev_b32 v5, 7, v5
v_and_b32 v6, 3, v1
v_lshl_add_u32 v5, v6, 3, v5
v_add_u32 v5, s24, v5
v_lshlrev_b32 v7, 4, v1
v_mov_b32 v8, 0x3f803f80
v_mov_b32 v9, 0x3f803f80
v_mov_b32 v10, 0x3f803f80
v_mov_b32 v11, 0x3f803f80
""")
    for tt in range(4):
        T=56+4*tt
        p(f"""
s_lshl_b32 s54, s49, 2
s_add_u32 s54, s54, {tt}
s_cmp_eq_u32 s44, 3072
s_cbranch_scc1 pp_t3_{tt}
s_mul_hi_u32 s55, s54, 0x33333334
s_lshl_b32 s{T}, s55, 2
s_mul_i32 s55, s55, 5
s_sub_u32 s{T+1}, s54, s55
s_mov_b32 s{T+2}, 0
s_branch pp_td_{tt}
pp_t3_{tt}:
s_mul_hi_u32 s55, s54, 0x15555556
s_lshl_b32 s{T}, s55, 2
s_mul_i32 s55, s55, 12
s_sub_u32 s55, s54, s55
s_mul_hi_u32 s{T+1}, s55, 0x55555556
s_mul_i32 s{T+2}, s{T+1}, 3
s_sub_u32 s{T+2}, s55, s{T+2}
pp_td_{tt}:
""")
    p("""
s_cmp_eq_u32 s44, 3072
s_cselect_b32 s72, 12, 5
s_mul_i32 s72, s72, s50
s_add_u32 s72, s72, s45
""")
    F=32
    for uu in range(4):
        p.wait_vm(f"r{uu}")
        for tt in range(4):
            f=F+16*uu+4*tt
            p.ds(f"ds_read_b64_tr_b16 {vr(f,2)}, v5 offset:{uu*4096+32*tt}")
            p.ds(f"ds_read_b64_tr_b16 {vr(f+2,2)}, v5 offset:{uu*4096+512+32*tt}", f"f{uu}{tt}")
        for tt in range(4):
            T=56+4*tt; f=F+16*uu+4*tt
            p(f"""
s_sub_u32 s73, {uu}, s{T+1}
s_and_b32 s73, s73, 3                  ; i
s_add_u32 s74, s73, 1
s_cmp_eq_u32 s73, 0
s_cselect_b32 s74, 0, s74
s_cmp_eq_u32 s{T+1}, 4
s_cselect_b32 s74, 1, s74
s_cselect_b32 s75, {uu}, s{T+1}        ; wave
s_mul_i32 s73, s73, 3
s_add_u32 s73, s73, s{T+2}
s_cmp_eq_u32 s44, 3072
s_cselect_b32 s74, s73, s74
s_add_u32 s75, s75, s{T}
s_mul_i32 s75, s75, {NFRAG}
s_add_u32 s75, s75, s72
s_add_u32 s75, s75, s74
s_lshl_b32 s75, s75, 10
s_add_u32 s75, s75, {WP}
""")
            p.wait_ds(f"f{uu}{tt}")
            p.vm(f"buffer_store_dwordx4 {vr(f,4)}, v7, s[32:35], s75 offen {st}")
            c = "0" if uu==0 else vr(16+4*tt,4)
            p(f"v_mfma_f32_16x16x32_bf16 {vr(16+4*tt,4)}, {vr(f,4)}, v[8:11], {c}")
    p(f"""
s_cmp_eq_u32 s48, 0
s_cbranch_scc1 k1_exit
s_lshl_b32 s73, s44, 1
s_mov_b32 s74, {CS1}
s_cmp_eq_u32 s44, 3072
s_cselect_b32 s74, {CS3}, s74
s_mul_i32 s73, s73, s50
s_add_u32 s73, s73, s74
s_lshl_b32 s74, s49, 8
s_add_u32 s73, s73, s74
v_lshlrev_b32 v4, 4, v4
s_mov_b32 exec_lo, 0x00010001
s_mov_b32 exec_hi, 0x00010001
""")
    for tt in range(4):
        p.vm(f"buffer_store_dwordx4 {vr(16+4*tt,4)}, v4, s[32:35], s73 offen offset:{64*tt} {st}")
    p.vmq=[]

def gen_k1(cfg):
    p=Prog()
    p(f"""
s_cmp_ge_u32 s2, 256
s_cbranch_scc1 k1_exit
s_load_dwordx4 s[4:7], s[0:1], 32      ; ssm_k, D
s_load_dwordx8 s[36:43], s[0:1], 56    ; w1..w4
s_load_dwordx2 s[10:11], s[0:1], 104
v_lshrrev_b32 v2, 6, v0
v_and_b32 v1, 63, v0
v_readfirstlane_b32 s20, v2
s_and_b32 s22, s2, 7
s_lshr_b32 s23, s2, 3
s_waitcnt lgkmcnt(0)
s_mov_b64 s[8:9], s[6:7]
""")
    p.srd(12,4,NBYTES); p.srd(32,10,WS_USED)
    p(f"""
s_cmp_ge_u32 s23, 20
s_cbranch_scc1 k1_pp
s_mul_i32 s21, s22, 20
s_add_u32 s21, s21, s23
s_lshl_b32 s21, s21, 2
s_add_u32 s21, s21, s20
""")
    conv_body(p,cfg)
    p(f"""
s_endpgm
k1_pp:
s_mul_i32 s21, s22, 12
s_add_u32 s21, s21, s23
s_sub_u32 s21, s21, 20
s_lshl_b32 s21, s21, 2
s_add_u32 s21, s21, s20
""")
    prepack_body(p,cfg)
    p("k1_exit:\ns_endpgm")
    return kernel("conv_kernel", p, 256, 256), f"; @launch kernel=conv_kernel grid=(256,1,1) block=(256,1,1) lds={4*CW}"
```

```python
S=2048; DM=640; FF=1536
KVT  = 0x000000
YT   = 0x280000
WP   = 0x500000
CS1  = 0xA50000
CS3  = 0xA54000
ZERO = 0xA60000
FLAGS= ZERO
STATS= ZERO+0x4000
HALO = STATS+0x80000
ZERO_BYTES = 0x140000
ACT  = 0xC00000
TEAM_BYTES = 360448
A0_OFF=0; A1_OFF=81920; G_OFF=163840
STAMP= 0x1800000
WS_USED = 0x1900000
assert HALO+2*32*5120 <= ZERO+ZERO_BYTES
assert ACT+32*TEAM_BYTES <= STAMP
NFRAG=170
W1_POS=0; W2_POS=25; W3_POS=50; W4_POS=110
NBYTES = S*DM*2
```

```python
import sys, importlib
sys.path.insert(0,'dev')
from layout import *
import k0,k1
def build(cfg, kernels=("k0","k1","k2")):
    heads=[]; bodies=[]
    for k in kernels:
        m=importlib.import_module(k)
        b,h=getattr(m,"gen_"+k)(cfg)
        heads.append(h); bodies.append(b)
    if cfg.get("repeat"): heads=heads+[heads[0],heads[-1]]
    hdr=open('interleave_layers__ssm_conv_h3__mixer_s_mlp__prompt.s.ref').read().split("; Override launch")[0]
    note=open('note.txt').read() if "kf" in kernels else ""
    return hdr+"\n".join(heads)+"\n"+note.rstrip()+'\n.amdgcn_target "amdgcn-amd-amdhsa--gfx950"\n'+"".join(bodies)
if __name__=="__main__":
    ks=sys.argv[2].split(",") if len(sys.argv)>2 else ("k0","k1","k2")
    cfg=eval(sys.argv[3]) if len(sys.argv)>3 else {}
    open(sys.argv[1],"w").write(build(cfg,ks))
    open(sys.argv[1]+".stamps","w").write(" ".join(cfg.get("_stamps",[])))
```

```python
import re

TRANS = ("v_exp_f32","v_log_f32","v_rcp_f32","v_rsq_f32","v_sqrt_f32","v_sin_f32","v_cos_f32","v_rcp_iflag_f32")
REG = re.compile(r"^(-|\|)?(?:abs\()?([vas])(?:(\d+)|\[(\d+):(\d+)\])\)?\|?$")

def regs_of(op):
    op = op.strip()
    if op in ("vcc",): return [("s",106),("s",107)]
    if op == "vcc_lo": return [("s",106)]
    if op == "vcc_hi": return [("s",107)]
    if op == "exec": return [("s",126),("s",127)]
    if op == "exec_lo": return [("s",126)]
    if op == "exec_hi": return [("s",127)]
    if op == "m0": return [("s",124)]
    m = REG.match(op)
    if not m: return []
    f = m.group(2)
    if m.group(3) is not None: return [(f,int(m.group(3)))]
    return [(f,i) for i in range(int(m.group(4)), int(m.group(5))+1)]

class Ins:
    __slots__=("text","mn","ops","cls","wr","rd","passes","srcC","srcAB","ws","wide","lds","target","dpp")
    def __init__(self, text):
        self.text = text
        t = text.split(";")[0].strip()
        parts = t.split(None,1)
        mn = parts[0]; self.mn = mn
        rest = parts[1] if len(parts)>1 else ""
        ops=[]; depth=0; cur=""
        for ch in rest:
            if ch in "[(": depth+=1
            if ch in "])": depth-=1
            if ch=="," and depth==0: ops.append(cur.strip()); cur=""
            else: cur+=ch
        if cur.strip(): ops.append(cur.strip())
        mods=""
        if ops:
            last=ops[-1].split(None,1)
            ops[-1]=last[0]; mods=last[1] if len(last)>1 else ""
        self.ops=ops
        self.passes=0; self.srcC=[]; self.srcAB=[]; self.ws=1; self.wide=False; self.lds=False; self.target=None
        self.dpp = ("_dpp" in mn) or ("row_" in mods) or ("wave_s" in mods) or ("quad_perm" in mods)
        R=[regs_of(o) for o in ops]
        flat=lambda L:[x for l in L for x in l]
        base=re.sub(r"_(e32|e64|dpp|sdwa)$","",mn)
        if mn.startswith("v_mfma"):
            self.cls="mfma"; self.wr=R[0]; self.rd=flat(R[1:]); self.srcAB=flat(R[1:3]); self.srcC=R[3]
            self.passes = 8 if "32x32" in mn else 4
        elif mn.startswith("v_"):
            self.cls="trans" if base in TRANS else "valu"
            if base.startswith("v_cmp"):
                self.wr=R[0]; self.rd=flat(R[1:])
                assert not base.startswith("v_cmpx")
            elif "permlane" in base and "swap" in base:
                self.wr=flat(R); self.rd=flat(R)
            elif base in ("v_add_co_u32","v_sub_co_u32","v_subrev_co_u32","v_addc_co_u32","v_subb_co_u32"):
                self.wr=flat(R[:2]); self.rd=flat(R[2:])
            elif base.startswith("v_fmac") or base.startswith("v_pk_fmac") or base.startswith("v_dot2c") or base=="v_writelane_b32":
                self.wr=R[0]; self.rd=flat(R)
            elif base=="v_nop":
                self.wr=[]; self.rd=[]
            else:
                self.wr=R[0]; self.rd=flat(R[1:])
            if self.dpp: self.rd = self.rd + R[0]
        elif mn.startswith("ds_"):
            self.cls="ds"
            if mn.startswith("ds_read") or mn.startswith("ds_bpermute") or mn.startswith("ds_permute") or mn.startswith("ds_swizzle"):
                self.wr=R[0]; self.rd=flat(R[1:])
            else: self.wr=[]; self.rd=flat(R)
        elif mn.startswith("buffer_") or mn.startswith("global_"):
            self.cls="vmem"
            self.lds = (" lds" in " "+mods) or ("_lds_" in mn)
            if "load" in mn and not self.lds: self.wr=R[0]; self.rd=flat(R[1:])
            elif "atomic" in mn and "sc0" in mods: self.wr=R[0]; self.rd=flat(R)
            else: self.wr=[]; self.rd=flat(R)
            if self.lds: self.rd=self.rd+[("s",124)]
            self.wide = ("store_dwordx4" in mn or "store_dwordx3" in mn)
        elif mn.startswith("s_"):
            self.cls="salu"
            if mn=="s_nop": self.ws=int(ops[0],0)+1; self.wr=[]; self.rd=[]
            elif mn.startswith("s_cbranch") or mn=="s_branch":
                self.cls="branch"; self.target=ops[0]; self.wr=[]; self.rd=[]
            elif mn.startswith("s_cmp") or mn.startswith("s_bitcmp") or mn in ("s_waitcnt","s_barrier","s_endpgm","s_setprio","s_sleep"):
                self.wr=[]; self.rd=flat(R)
            elif mn.startswith("s_load") or mn.startswith("s_mem"):
                self.cls="smem"; self.wr=R[0]; self.rd=flat(R[1:])
            elif "saveexec" in mn:
                self.wr=R[0]+[("s",126),("s",127)]; self.rd=flat(R[1:])
            else:
                self.wr=R[0]; self.rd=flat(R[1:])
        else:
            raise ValueError("cannot parse: "+text)

def need(p, c):
    n=0
    pw=set(p.wr);
    def hit(a,b): return bool(set(a)&set(b))
    pv = p.cls in ("valu","trans")
    cv = c.cls in ("valu","trans")
    vw=[r for r in p.wr if r[0]!="s"]; sw=[r for r in p.wr if r[0]=="s"]
    if pv:
        if c.cls=="mfma" and hit(vw,c.rd): n=max(n,2)
        if sw:
            if c.cls=="vmem" and hit(sw,c.rd): n=max(n,5)
            if cv and hit(sw,c.rd): n=max(n, 4 if c.mn.startswith(("v_readlane","v_writelane")) else 2)
            if c.cls in("salu","branch") and hit(sw,c.rd): n=max(n,1)
        if c.mn.startswith(("v_readlane","v_readfirstlane")) and hit(vw,c.rd): n=max(n,1)
        if "permlane" in c.mn and hit(vw,c.rd): n=max(n,2)
        if c.dpp and hit(vw,c.rd): n=max(n,2)
        if p.cls=="trans" and (cv or c.cls in("ds","vmem","mfma")) and hit(vw,c.rd): n=max(n,1)
    if p.cls=="mfma":
        big = 8 if p.passes==4 else 12
        if cv and (hit(p.wr,c.rd) or hit(p.wr,c.wr)): n=max(n,big)
        if c.cls in("ds","vmem") and (hit(p.wr,c.rd) or hit(p.wr,c.wr)): n=max(n,big)
        if c.cls=="mfma":
            if hit(p.wr,c.srcAB): n=max(n,big)
            if hit(p.wr,c.srcC) and not (p.wr==c.srcC and p.passes==c.passes): n=max(n,big-2)
            elif hit(p.wr,c.wr) and not hit(p.wr,c.srcC): n=max(n,big)
        if cv and hit(p.srcC,c.wr): n=max(n, 3 if p.passes==4 else 7)
    if p.cls=="vmem" and p.wide:
        data=regs_of(p.ops[0]) if p.mn.startswith("buffer") else regs_of(p.ops[1])
        if hit(data,c.wr): n=max(n, 2)
    if p.cls=="salu" and ("s",124) in pw and c.cls=="vmem" and c.lds: n=max(n,1)
    return n

MAXW=12
def fix_hazards(lines):
    items=[]
    for l in lines:
        s=l.split(";")[0].strip()
        if not s or s.startswith("."): items.append(("x",l))
        elif s.endswith(":"): items.append(("l",s[:-1],l))
        else: items.append(("i",Ins(l)))
    srcs={}
    for k,it in enumerate(items):
        if it[0]=="i" and it[1].target: srcs.setdefault(it[1].target,[]).append(k)
    pad=[0]*len(items)
    def scan(k, dist, c, seen):
        best=0
        j=k-1
        while j>=0 and dist<MAXW:
            it=items[j]
            if it[0]=="l":
                for s in srcs.get(it[1],[]):
                    if (s,dist) not in seen:
                        seen.add((s,dist))
                        best=max(best, scan(s+1, dist, c, seen))
            elif it[0]=="i":
                p=it[1]
                if p.mn in("s_branch","s_endpgm") and j!=k-1+0 and False: pass
                nn=need(p,c)
                if nn>dist: best=max(best, nn-dist)
                dist+=p.ws+pad[j]
                if p.mn in ("s_branch","s_endpgm") and not (j==k-1 and seen):
                    break
            j-=1
        return best
    for k,it in enumerate(items):
        if it[0]=="i":
            pad[k]=scan(k,0,it[1],set())
    out=[]; total=0
    for k,it in enumerate(items):
        if it[0]=="i":
            if pad[k]:
                out.append(f"s_nop {pad[k]-1}"); total+=pad[k]
            out.append(it[1].text)
        elif it[0]=="l": out.append(it[2])
        else: out.append(it[1])
    return out,total

class Tag:
    def __init__(self,tag,regs,text): self.tag=tag; self.regs=set(regs); self.text=text
    def __eq__(self,o): return self.tag==(o.tag if isinstance(o,Tag) else o)
    def __hash__(self): return hash(self.tag)

class Prog:
    def __init__(self):
        self.lines=[]; self.vmq=[]; self.lgq=[]; self.uid=0; self.maxvm=0
    def __call__(self, s):
        for l in s.split("\n"):
            l=l.strip()
            if l:
                self.check(l); self.lines.append(l)
    def check(self,l):
        t=l.split(";")[0].strip()
        if not t or t.endswith(":") or t.startswith((".","s_")): return
        busy=[e for e in list(self.vmq)+list(self.lgq) if isinstance(e,Tag) and e.regs]
        if not busy: return
        i=Ins(l); isload=i.cls in("vmem","ds")
        for e in busy:
            same_queue = isload and ((i.cls=="vmem")==e.text.startswith(("buffer","global")))
            assert not (e.regs & set(i.rd)), f"reads a register still being loaded: {l}   <- {e.text}"
            if not same_queue: assert not (e.regs & set(i.wr)), f"writes a register still being loaded: {l}   <- {e.text}"
    def label(self, base="L"):
        self.uid+=1; return f"{base}_{self.uid}"
    def vm_room(self):
        if len(self.vmq)>=60:
            self._wait(vm=59); self.vmq=self.vmq[len(self.vmq)-59:]
    def vm(self, s, tag=None):
        self.vm_room()
        self(s); self.vmq.append(Tag(tag,Ins(s).wr,s)); self.maxvm=max(self.maxvm,len(self.vmq))
        assert len(self.vmq)<=63, "too many outstanding vm ops"
    def vm_count(self, tag=None):
        self.vmq.append(tag); self.maxvm=max(self.maxvm,len(self.vmq)); assert len(self.vmq)<=63
    def wait_vm(self, *tags):
        idx=-1
        for i,t in enumerate(self.vmq):
            if t in tags: idx=i
        if idx<0: return
        n=len(self.vmq)-1-idx
        self._wait(vm=n); self.vmq=self.vmq[idx+1:]
    def wait_vm0(self):
        self._wait(vm=0); self.vmq=[]
    def ds(self, s, tag=None):
        self(s); self.lgq.append(Tag(tag,Ins(s).wr,s))
    def wait_ds(self, *tags):
        idx=-1
        for i,t in enumerate(self.lgq):
            if t in tags: idx=i
        if idx<0: return
        n=len(self.lgq)-1-idx
        self._wait(lg=min(n,15));
        self.lgq=self.lgq[idx+1:] if n<=15 else self.lgq[len(self.lgq)-15:]
    def wait_ds0(self):
        self._wait(lg=0); self.lgq=[]
    def _wait(self, vm=None, lg=None):
        if self.lines and self.lines[-1].startswith("s_waitcnt"):
            prev=self.lines.pop()
            m=re.search(r"vmcnt\((\d+)\)",prev);
            if m: vm=int(m.group(1)) if vm is None else min(vm,int(m.group(1)))
            m=re.search(r"lgkmcnt\((\d+)\)",prev)
            if m: lg=int(m.group(1)) if lg is None else min(lg,int(m.group(1)))
        s="s_waitcnt"
        if vm is not None: s+=f" vmcnt({vm})"
        if lg is not None: s+=f" lgkmcnt({lg})"
        self.lines.append(s)
    def srd(self, d, b, size, off=0):
        if off:
            self(f"s_add_u32 s{d}, s{b}, {off}\ns_addc_u32 s{d+1}, s{b+1}, 0\ns_and_b32 s{d+1}, s{d+1}, 0xffff")
        else:
            self(f"s_mov_b32 s{d}, s{b}\ns_and_b32 s{d+1}, s{b+1}, 0xffff")
        self(f"s_mov_b32 s{d+2}, {size}\ns_mov_b32 s{d+3}, 0x20000")
    def text(self):
        out,total=fix_hazards(self.lines)
        return "\n".join(out)+"\n", total

def kernel(name, prog, vgpr, acc):
    body,n=prog.text()
    return (f".text\n.globl {name}\n.p2align 8\n.type {name},@function\n{name}:\n"+body+
            f"""{name}_end:
.section .rodata,"a"
.p2align 6
.amdhsa_kernel {name}
  .amdhsa_next_free_vgpr {vgpr}
  .amdhsa_next_free_sgpr 102
  .amdhsa_accum_offset {acc}
  .amdhsa_group_segment_fixed_size 0
  .amdhsa_kernarg_size 112
  .amdhsa_user_sgpr_count 2
  .amdhsa_user_sgpr_kernarg_segment_ptr 1
  .amdhsa_system_sgpr_workgroup_id_x 1
.end_amdhsa_kernel
""")
def vr(a,n=1): return f"v{a}" if n==1 else f"v[{a}:{a+n-1}]"
def ar(a,n=1): return f"a{a}" if n==1 else f"a[{a}:{a+n-1}]"
def sr(a,n=1): return f"s{a}" if n==1 else f"s[{a}:{a+n-1}]"

def rt_begin(p,cfg):
    if cfg.get("stamp"): p("s_memrealtime s[100:101]\ns_memtime s[96:97]\ns_waitcnt lgkmcnt(0)")
def rt_end(p,cfg,kern,srdreg,base):
    if cfg.get("stamp"):
        p(f"""s_mov_b64 exec, -1
s_waitcnt vmcnt(0)
s_memrealtime s[98:99]
s_memtime s[94:95]
s_waitcnt lgkmcnt(0)
s_sub_u32 s94, s94, s96
v_mov_b32 v4, s100
v_mov_b32 v5, s98
v_mov_b32 v6, s94
v_lshrrev_b32 v8, 6, v0
v_lshlrev_b32 v8, 4, v8
s_lshl_b32 s97, s2, 6
s_add_u32 s97, s97, {base+0x80000+kern*0x10000}
buffer_store_dwordx3 v[4:6], v8, {srdreg}, s97 offen""")
```

```python
from asmgen import *
from layout import *

def gen_k0(cfg):
    p=Prog()
    p(f"""
s_cmp_ge_u32 s2, 320
s_cbranch_scc1 k0_exit""")
    rt_begin(p,cfg)
    p(f"""
s_load_dwordx4 s[4:7], s[0:1], 8
s_load_dwordx2 s[8:9], s[0:1], 24
s_load_dwordx2 s[10:11], s[0:1], 104
s_mul_hi_u32 s20, s2, 0x1999999a
s_mul_i32 s21, s20, 10
s_sub_u32 s21, s2, s21
v_and_b32 v1, 31, v0
v_lshrrev_b32 v2, 5, v0
s_lshl_b32 s22, s20, 6                  ; s0
v_lshl_add_u32 v3, v2, 3, s22
v_mul_u32_u24 v4, 1280, v3
s_lshl_b32 s23, s21, 7
v_lshl_add_u32 v5, v1, 2, s23
v_add_u32 v4, v4, v5
v_subrev_u32 v6, 3840, v4
v_lshlrev_b32 v7, 2, v5
s_mov_b32 s24, 5120
s_waitcnt lgkmcnt(0)
""")
    p.srd(12,4,NBYTES); p.srd(16,6,NBYTES); p.srd(28,8,DM*8); p.srd(32,10,WS_USED)
    nt=cfg.get("k0_nt","nt")
    K=16; V=32; SK=8
    for i in range(3): p.vm(f"buffer_load_dword v{K+i}, v6, s[12:15], 0 offen offset:{1280*i} {nt}", "k")
    for i in range(8):
        so = "0" if i<4 else "s24"
        p.vm(f"buffer_load_dword v{K+3+i}, v4, s[12:15], {so} offen offset:{1280*(i%4)} {nt}", "k")
    p.vm(f"buffer_load_dwordx4 v[{SK}:{SK+3}], v7, s[28:31], 0 offen", "k")
    for i in range(8):
        so = "0" if i<4 else "s24"
        p.vm(f"buffer_load_dword v{V+i}, v4, s[16:19], {so} offen offset:{1280*(i%4)} {nt}", "v")
    p(f"""
v_mov_b32 v12, 0
v_mov_b32 v13, 0
v_mov_b32 v14, 0
v_mov_b32 v15, 0
v_lshlrev_b32 v44, 4, v0
s_lshl_b32 s25, s2, 12
s_add_u32 s25, s25, {ZERO}
""")
    p.vm("buffer_store_dwordx4 v[12:15], v44, s[32:35], s25 offen", "z")
    if cfg.get("code_pf",1):
        p(f"""
s_lshr_b32 s40, s2, 3
s_cmp_ge_u32 s40, 4
s_cbranch_scc1 k0_nopf
s_getpc_b64 s[40:41]
k0_pc:
s_add_u32 s40, s40, conv_kernel-k0_pc
s_addc_u32 s41, s41, 0
s_and_b32 s41, s41, 0xffff
s_mov_b32 s42, mix_kernel_end-conv_kernel
s_mov_b32 s43, 0x20000
s_lshr_b32 s44, s2, 3
s_lshl_b32 s44, s44, 15
v_lshlrev_b32 v50, 7, v0
buffer_load_dword v50, v50, s[40:43], s44 offen
k0_nopf:
""")
    p(f"""
v_mul_u32_u24 v45, 288, v1
v_sub_u32 v46, 7, v2
v_lshl_add_u32 v45, v46, 4, v45
v_lshrrev_b32 v46, 3, v0                ; channel 0..31
v_and_b32 v47, 7, v0
v_mul_u32_u24 v48, 144, v46
v_lshl_add_u32 v48, v47, 4, v48
v_lshlrev_b32 v49, 12, v46
v_lshl_add_u32 v49, v47, 4, v49
s_lshl_b32 s26, s21, 18                 ; group*64*4096
s_lshl_b32 s27, s20, 7
s_sub_u32 s27, {4096-128}, s27
s_add_u32 s26, s26, s27
s_add_u32 s26, s26, {KVT}
s_add_u32 s27, s26, {32*4096}
s_mov_b32 s36, 0xffff0000
""")
    p.wait_vm("k")
    KF=64; SF=52
    for t in range(4):
        src=SK+(t>>1)
        for c in range(2):
            r=src+2*c
            if t&1: p(f"v_and_b32 v{SF+2*t+c}, s36, v{r}")
            else:   p(f"v_lshlrev_b32 v{SF+2*t+c}, 16, v{r}")
    for i in range(11):
        p(f"v_lshlrev_b32 v{KF+2*i}, 16, v{K+i}\nv_and_b32 v{KF+2*i+1}, s36, v{K+i}")
    KS=96
    for i in range(8):
        p(f"v_pk_mul_f32 {vr(KS+2*i,2)}, {vr(KF+2*i,2)}, {vr(SF+6,2)}")
    for t in (2,1,0):
        for i in range(8):
            p(f"v_pk_fma_f32 {vr(KS+2*i,2)}, {vr(KF+2*(i+3-t),2)}, {vr(SF+2*t,2)}, {vr(KS+2*i,2)}")
    p.wait_vm("v")
    for i in range(8):
        p(f"v_lshlrev_b32 v{KF+2*i}, 16, v{V+i}\nv_and_b32 v{KF+2*i+1}, s36, v{V+i}")
    for i in range(8):
        p(f"v_pk_mul_f32 {vr(KS+2*i,2)}, {vr(KS+2*i,2)}, {vr(KF+2*i,2)}")
    for c in range(2):
        for d in range(4):
            p(f"v_cvt_pk_bf16_f32 v{16+4*c+d}, v{KS+2*(7-2*d)+c}, v{KS+2*(6-2*d)+c}")
        p.ds(f"ds_write_b128 v45, {vr(16+4*c,4)} offset:{144*c}")
    p.wait_ds0(); p("s_barrier")
    p.ds("ds_read_b128 v[24:27], v48","a"); p.ds(f"ds_read_b128 v[28:31], v48 offset:{32*144}","b")
    st=cfg.get("k0_st","")
    p.wait_ds("a"); p.vm(f"buffer_store_dwordx4 v[24:27], v49, s[32:35], s26 offen {st}")
    p.wait_ds("b"); p.vm(f"buffer_store_dwordx4 v[28:31], v49, s[32:35], s27 offen {st}")
    rt_end(p,cfg,0,"s[32:35]",STAMP)
    p("k0_exit:\ns_endpgm")
    return kernel("tr_kernel", p, 128, 128), "; @launch kernel=tr_kernel grid=(320,1,1) block=(256,1,1) lds=9216"
```

```python
from asmgen import *
from layout import *

CW=21504; CP=4160; UO=16640
def conv_body(p, cfg):
    nt=cfg.get("h_nt","")
    p(f"""
s_lshr_b32 s22, s21, 1
s_lshl_b32 s22, s22, 2
s_load_dword s23, s[8:9], s22
s_mul_i32 s24, s20, {CW}
s_lshl_b32 s25, s21, 12                ; channel*4096
v_lshlrev_b32 v2, 4, v1                ; lane*16
""")
    L0=64; L2=80; N1=96; E=100
    for ch in range(4):
        p.vm(f"buffer_load_dwordx4 {vr(L0+4*ch,4)}, v2, s[12:15], s25 offen offset:{1024*ch} {nt}", f"h{ch}")
        p.vm(f"buffer_load_dwordx4 {vr(L2+4*ch,4)}, v2, s[12:15], s25 offen offset:{1024*ch+4} {nt}", f"h{ch}")
        p.vm(f"buffer_load_dword v{N1+ch}, v2, s[12:15], s25 offen offset:{1024*ch+20} {nt}", f"h{ch}")
    p(f"s_add_u32 s26, s25, {KVT}\ns_add_u32 m0, s24, {UO}")
    for ch in range(4):
        p.vm(f"buffer_load_dwordx4 v2, s[32:35], s26 offen offset:{1024*ch} lds", "u")
    p(f"""
v_and_b32 v3, 15, v1                   ; m / n
v_lshrrev_b32 v4, 4, v1                ; g
v_add_u32 v5, s24, v2
v_mov_b32 v8, 0
v_mov_b32 v9, 0
v_mov_b32 v10, 0
v_mov_b32 v11, 0
v_add_u32 v6, {UO+4096}, v5
v_bfe_u32 v7, v1, 1, 2
v_mul_u32_u24 v7, {CP}, v7
v_and_b32 v12, 1, v1
v_lshl_add_u32 v7, v12, 4, v7
v_add_u32 v7, s24, v7
v_cmp_gt_u32 vcc, 32, v1
v_cndmask_b32 v6, v7, v6, vcc
s_mov_b32 exec_hi, 0xff
""")
    p.ds("ds_write_b128 v6, v[8:11]")
    p(f"""
s_mov_b64 exec, -1
v_add_u32 v12, 1, v3
v_and_b32 v13, 3, v12
v_sub_u32 v12, v12, v13
v_lshl_add_u32 v12, v4, 3, v12
v_lshlrev_b32 v12, 1, v12
v_mul_u32_u24 v13, {CP}, v13
v_add3_u32 v14, v12, v13, s24          ; v14 = A address
v_lshlrev_b32 v12, 5, v3
v_lshlrev_b32 v13, 4, v4
v_sub_u32 v12, v13, v12
v_add_u32 v12, {UO+480}, v12
v_add_u32 v15, s24, v12                ; v15 = B address
v_lshlrev_b32 v12, 5, v3
v_lshl_add_u32 v16, v4, 3, v12
s_waitcnt lgkmcnt(0)
s_and_b32 s22, s21, 1
s_lshl_b32 s22, s22, 4
s_lshr_b32 s23, s23, s22
s_and_b32 s23, s23, 0xffff
v_sub_u32 v12, 15, v3
v_and_b32 v13, 1, v12
v_lshlrev_b32 v13, 4, v13
v_lshlrev_b32 v13, v13, s23
v_lshrrev_b32 v12, 1, v12
v_lshlrev_b32 v17, 2, v4
v_sub_u32 v12, v12, v17
""")
    p.lgq=[]
    for d in range(4):
        p(f"v_cmp_eq_u32 vcc, {d}, v12\nv_cndmask_b32 v{20+d}, 0, v13, vcc")
    for ch in range(4):
        p.wait_vm(f"h{ch}")
        a=L0+4*ch; b=L2+4*ch
        p.ds(f"ds_write_b128 v5, {vr(a,4)} offset:{32+1024*ch}")
        p.ds(f"ds_write_b128 v5, {vr(b,4)} offset:{2*CP+32+1024*ch}")
        e=E+8*(ch&1)
        for k in range(4): p(f"v_alignbit_b32 v{e+k}, v{b+k}, v{a+k}, 16")
        nxt=[a+2,a+3,b+3,N1+ch]
        for k in range(4): p(f"v_alignbit_b32 v{e+4+k}, v{nxt[k]}, v{b+k}, 16")
        p.ds(f"ds_write_b128 v5, {vr(e,4)} offset:{CP+32+1024*ch}")
        p.ds(f"ds_write_b128 v5, {vr(e+4,4)} offset:{3*CP+32+1024*ch}")
        if ch==0:
            p(f"v_lshlrev_b32 v12, 16, v{a}\ns_mov_b64 exec, 1")
            p.ds(f"ds_write_b32 v5, v12 offset:{CP+28}")
            p.ds(f"ds_write_b32 v5, v{a} offset:{2*CP+28}")
            p.ds(f"ds_write_b32 v5, v12 offset:{3*CP+24}")
            p.ds(f"ds_write_b32 v5, v{e} offset:{3*CP+28}")
            p("s_mov_b64 exec, -1")
    p.wait_vm("u")
    p.wait_ds0()
    ACC=32; AB=[128,160]; BB=[192,224]
    def reads(r):
        L=[]
        for x in range(8):
            a=AB[r&1]+4*x; b=BB[r&1]+4*x
            L.append((f"ds_read_b64 {vr(a,2)}, v14 offset:{64*r+512*x}", None))
            L.append((f"ds_read_b64 {vr(a+2,2)}, v14 offset:{64*r+512*x+8}", f"A{r}_{x}"))
            L.append((f"ds_read_b128 {vr(b,4)}, v15 offset:{512*(7-x)+64*r}", f"B{r}_{x}"))
        return L
    for s,t in reads(0)[:12]: p.ds(s,t)
    pend=reads(0)[12:]
    started=set()
    for r in range(8):
        pairs=[(q,i) for L in range(8) for q in range(L+1) for i in range(L+1) if max(q,i)==L and q+i<=7]
        if r==7: pairs.sort(key=lambda x:(x[0]+x[1]))
        if r<7: pend=pend+reads(r+1)
        for (q,i) in pairs:
            p.wait_ds(f"A{r}_{q}", f"B{r}_{i}")
            j=q+i
            c = vr(ACC+4*j,4) if j in started else "0"
            started.add(j)
            p(f"v_mfma_f32_16x16x32_bf16 {vr(ACC+4*j,4)}, {vr(AB[r&1]+4*q,4)}, {vr(BB[r&1]+4*i,4)}, {c}")
            if r==0 and q==0:
                p(f"v_mfma_f32_16x16x32_bf16 {vr(ACC+4*j,4)}, v[20:23], {vr(BB[0]+4*i,4)}, {vr(ACC+4*j,4)}")
            if pend:
                s,t=pend.pop(0); p.ds(s,t)
            if r==0 and pend and len(pend)>24:
                s,t=pend.pop(0); p.ds(s,t)
    assert not pend
    p(f"s_add_u32 s26, s25, {YT}")
    st=cfg.get("y_st","")
    for j in range(8):
        p(f"v_cvt_pk_bf16_f32 v{64+2*j}, v{ACC+4*j}, v{ACC+4*j+1}\nv_cvt_pk_bf16_f32 v{65+2*j}, v{ACC+4*j+2}, v{ACC+4*j+3}")
        p.vm(f"buffer_store_dwordx2 {vr(64+2*j,2)}, v16, s[32:35], s26 offen offset:{512*j} {st}")
    p.vmq=[]

def prepack_body(p, cfg, fin="k1_fin"):
    nt=cfg.get("w_nt","nt"); st=cfg.get("wp_st","")
    p(f"""
s_cmp_ge_u32 s21, 74
s_cbranch_scc1 {fin}
s_mov_b32 s44, 1280
s_mov_b32 s45, 0
s_mul_i32 s50, s20, 5
s_mov_b64 s[12:13], s[36:37]
s_mov_b32 s14, {DM*DM*2}
s_mov_b32 s48, {CS1}
s_mov_b32 s49, s21
s_cmp_lt_u32 s21, 10
s_cbranch_scc1 pp_sel
s_sub_u32 s49, s21, 10
s_mov_b32 s45, {W2_POS}
s_mov_b64 s[12:13], s[38:39]
s_mov_b32 s48, 0
s_cmp_lt_u32 s21, 20
s_cbranch_scc1 pp_sel
s_sub_u32 s49, s21, 20
s_mov_b32 s45, {W3_POS}
s_mov_b64 s[12:13], s[40:41]
s_mov_b32 s14, {DM*FF*2}
s_mov_b32 s44, 3072
s_mov_b32 s48, {CS3}
s_cmp_lt_u32 s21, 44
s_cbranch_scc1 pp_sel
s_sub_u32 s21, s21, 44
s_lshl_b32 s21, s21, 2
s_add_u32 s21, s21, s20
s_mul_hi_u32 s49, s21, 0x15555556
s_mul_i32 s50, s49, 12
s_sub_u32 s50, s21, s50
s_lshl_b32 s50, s50, 2
s_mov_b32 s45, {W4_POS}
s_mov_b64 s[12:13], s[42:43]
s_mov_b32 s44, 1280
s_mov_b32 s48, 0
pp_sel:
s_and_b32 s13, s13, 0xffff
s_mov_b32 s15, 0x20000
s_lshl_b32 s51, s50, 5
s_mul_i32 s51, s51, s44
s_lshl_b32 s52, s49, 7
s_add_u32 s51, s51, s52
s_lshl_b32 s53, s44, 3                 ; 8 rows
v_lshrrev_b32 v2, 3, v1
v_mul_lo_u32 v2, v2, s44
v_and_b32 v3, 7, v1
v_lshl_add_u32 v2, v3, 4, v2
s_mul_i32 s24, s20, 20480
s_mov_b32 m0, s24
""")
    for i in range(20):
        p.vm(f"buffer_load_dwordx4 v2, s[12:15], s51 offen {nt} lds", f"r{i//4}")
        if i<19: p(f"s_add_u32 s51, s51, s53\ns_add_u32 m0, m0, 1024")
    p(f"""
v_lshrrev_b32 v4, 4, v1                ; g
v_bfe_u32 v5, v1, 2, 2                 ; r
v_lshl_add_u32 v5, v4, 3, v5
v_lshlrev_b32 v5, 7, v5
v_and_b32 v6, 3, v1
v_lshl_add_u32 v5, v6, 3, v5
v_add_u32 v5, s24, v5
v_lshlrev_b32 v7, 4, v1
v_mov_b32 v8, 0x3f803f80
v_mov_b32 v9, 0x3f803f80
v_mov_b32 v10, 0x3f803f80
v_mov_b32 v11, 0x3f803f80
""")
    for tt in range(4):
        T=56+4*tt
        p(f"""
s_lshl_b32 s54, s49, 2
s_add_u32 s54, s54, {tt}
s_cmp_eq_u32 s44, 3072
s_cbranch_scc1 pp_t3_{tt}
s_mul_hi_u32 s55, s54, 0x33333334
s_lshl_b32 s{T}, s55, 2
s_mul_i32 s55, s55, 5
s_sub_u32 s{T+1}, s54, s55
s_mov_b32 s{T+2}, 0
s_branch pp_td_{tt}
pp_t3_{tt}:
s_mul_hi_u32 s55, s54, 0x15555556
s_lshl_b32 s{T}, s55, 2
s_mul_i32 s55, s55, 12
s_sub_u32 s55, s54, s55
s_mul_hi_u32 s{T+1}, s55, 0x55555556
s_mul_i32 s{T+2}, s{T+1}, 3
s_sub_u32 s{T+2}, s55, s{T+2}
pp_td_{tt}:
""")
    F=32
    for st_ in range(5):
        if st_==4: p(f"s_cmp_eq_u32 s45, {W4_POS}\ns_cbranch_scc1 {fin}")
        p(f"""
s_add_u32 s76, s50, {st_}
s_lshr_b32 s72, s76, 2                 ; chunk
s_and_b32 s76, s76, 3
s_cmp_eq_u32 s44, 3072
s_cselect_b32 s73, 12, 5
s_mul_i32 s72, s72, s73
s_add_u32 s72, s72, s45
""")
        p.wait_vm(f"r{st_}")
        for tt in range(4):
            f=F+16*st_+4*tt
            p.ds(f"ds_read_b64_tr_b16 {vr(f,2)}, v5 offset:{st_*4096+32*tt}")
            p.ds(f"ds_read_b64_tr_b16 {vr(f+2,2)}, v5 offset:{st_*4096+512+32*tt}", f"f{st_}{tt}")
        for tt in range(4):
            T=56+4*tt; f=F+16*st_+4*tt
            p(f"""
s_sub_u32 s73, s76, s{T+1}
s_and_b32 s73, s73, 3                  ; i
s_add_u32 s74, s73, 1
s_cmp_eq_u32 s73, 0
s_cselect_b32 s74, 0, s74
s_cmp_eq_u32 s{T+1}, 4
s_cselect_b32 s74, 1, s74
s_cselect_b32 s75, s76, s{T+1}         ; wave
s_mul_i32 s73, s73, 3
s_add_u32 s73, s73, s{T+2}
s_cmp_eq_u32 s44, 3072
s_cselect_b32 s74, s73, s74
s_add_u32 s75, s75, s{T}
s_mul_i32 s75, s75, {NFRAG}
s_add_u32 s75, s75, s72
s_add_u32 s75, s75, s74
s_lshl_b32 s75, s75, 10
s_add_u32 s75, s75, {WP}
""")
            p.wait_ds(f"f{st_}{tt}")
            p.vm(f"buffer_store_dwordx4 {vr(f,4)}, v7, s[32:35], s75 offen {st}")
            c = "0" if st_==0 else vr(16+4*tt,4)
            p(f"v_mfma_f32_16x16x32_bf16 {vr(16+4*tt,4)}, {vr(f,4)}, v[8:11], {c}")
    p(f"""
s_cmp_eq_u32 s48, 0
s_cbranch_scc1 {fin}
s_lshl_b32 s73, s20, 8
s_add_u32 s73, s73, 81920
v_lshl_add_u32 v4, v4, 4, s73
s_mov_b32 exec_lo, 0x00010001
s_mov_b32 exec_hi, 0x00010001
""")
    for tt in range(4): p(f"ds_write_b128 v4, {vr(16+4*tt,4)} offset:{64*tt}")
    p(f"""
s_mov_b64 exec, -1
s_waitcnt lgkmcnt(0)
s_barrier
s_cmp_lg_u32 s20, 0
s_cbranch_scc1 {fin}
v_lshlrev_b32 v4, 2, v1
v_add_u32 v5, 81920, v4
ds_read_b32 v12, v5
ds_read_b32 v13, v5 offset:256
ds_read_b32 v14, v5 offset:512
ds_read_b32 v15, v5 offset:768
s_lshl_b32 s74, s49, 8
s_add_u32 s74, s74, s48
s_waitcnt lgkmcnt(0)
v_add_f32 v12, v12, v13
v_add_f32 v14, v14, v15
v_add_f32 v12, v12, v14
buffer_store_dword v12, v4, s[32:35], s74 offen {st}
""")
    p.vmq=[]; p.lgq=[]

def gen_k1(cfg):
    p=Prog()
    p(f"""
s_cmp_ge_u32 s2, 256
s_cbranch_scc1 k1_exit""")
    rt_begin(p,cfg)
    p(f"""
s_load_dwordx4 s[4:7], s[0:1], 32      ; ssm_k, D
s_load_dwordx8 s[36:43], s[0:1], 56    ; w1..w4
s_load_dwordx2 s[10:11], s[0:1], 104
v_lshrrev_b32 v2, 6, v0
v_and_b32 v1, 63, v0
v_readfirstlane_b32 s20, v2
s_and_b32 s22, s2, 7
s_lshr_b32 s23, s2, 3
s_waitcnt lgkmcnt(0)
s_mov_b64 s[8:9], s[6:7]
""")
    p.srd(12,4,NBYTES); p.srd(32,10,WS_USED)
    p(f"""
s_cmp_ge_u32 s23, 20
s_cbranch_scc1 k1_pp
s_mul_i32 s21, s22, 20
s_add_u32 s21, s21, s23
s_lshl_b32 s21, s21, 2
s_add_u32 s21, s21, s20
""")
    conv_body(p,cfg)
    rt_end(p,cfg,1,"s[32:35]",STAMP)
    p(f"""
s_endpgm
k1_pp:
s_mul_i32 s21, s22, 12
s_add_u32 s21, s21, s23
s_sub_u32 s21, s21, 20
""")
    prepack_body(p,cfg)
    p("k1_fin:")
    rt_end(p,cfg,1,"s[32:35]",STAMP)
    p("k1_exit:\ns_endpgm")
    return kernel("conv_kernel", p, 256, 256), f"; @launch kernel=conv_kernel grid=(256,1,1) block=(256,1,1) lds={4*CW}"
```

```python
S=2048; DM=640; FF=1536
KVT  = 0x000000
KVS  = 0x280000
YG   = 0x1500000
WP   = 0x500000
CS1  = 0xA50000
CS3  = 0xA54000
ZERO = 0xA60000
TFLAG= ZERO+0x110000
TFAST= ZERO+0x1800
QREC = ZERO+0x130000
TSLOW= ZERO+0x128000
WFLAG= ZERO+0x118000
NWORD= ZERO+0x2000
FLAGS= ZERO
STATS= ZERO+0x4000
HALO = STATS+0x80000
ZERO_BYTES = 0x140000
ACT  = 0xC00000
TEAM_BYTES = 278528
A0_OFF=0; A1_OFF=81920; G_OFF=81920
STAMP= 0x1A00000
WS_USED = 0x2000000
assert HALO+2*32*5120 <= ZERO+ZERO_BYTES
assert ACT+32*TEAM_BYTES <= YG and YG+640*8192 <= STAMP
NFRAG=170
W1_POS=0; W2_POS=25; W3_POS=50; W4_POS=110
NBYTES = S*DM*2
```

```python
import sys, signal
sys.path.insert(0,"dev")
import build as B
base=""
for l in open(sys.argv[1]):
    l=l.strip()
    if not l or l.startswith("#"): continue
    n,t=[x.strip() for x in l.split("|",1)]
    if n=="BASE": base=t; continue
    c=eval("{"+base+","+t+"}"); c["stamp"]=1; c.setdefault("lstamp",("F",))
    signal.alarm(20)
    try: B.build(c,("kf",)); print(n,"ok")
    except AssertionError as e: print(n,"assert",e)
```
